```python
import torch

def _softmax(x, axis=-1):
    return torch.softmax(x, dim=axis)
def _gelu(x):
    return torch.nn.functional.gelu(x, approximate="tanh")
def _silu(x):
    return torch.nn.functional.silu(x)
def _sigmoid(x):
    return torch.sigmoid(x)
def _layernorm(x, axis=-1, eps=1e-5):
    m = x.mean(dim=axis, keepdim=True)
    v = x.var(dim=axis, keepdim=True, unbiased=False)
    return (x - m) / torch.sqrt(v + eps)
def _scatter_add(tgt, idx, src, axis=0):
    return tgt.clone().index_add_(axis, idx, src)
def _segment_sum(src, seg, n):
    out = torch.zeros((n,) + src.shape[1:], dtype=src.dtype)
    return out.index_add_(0, seg, src)
def _pad(x, pw):
    flat = tuple(v for pair in reversed(pw) for v in pair)
    return torch.nn.functional.pad(x, flat)

kernel_name = 'sequential_preLN__mha_block__glu_gated_geglu__prompt'

def setup_inputs():

    _w = (lambda a: (lambda t: t.to(torch.bfloat16) if t.is_floating_point() else t)(torch.as_tensor(a)))
    def _A_setup():
        B, S, D, H = 1, 2048, 640, 32
        return {
            "x": _w((lambda *s: torch.randn(*s, dtype=torch.bfloat16) * 0.05)(B, S, D)),
            "wqkv": _w((lambda *s: torch.randn(*s, dtype=torch.bfloat16) * 0.05)(D, 3 * D)),
            "wo": _w((lambda *s: torch.randn(*s, dtype=torch.bfloat16) * 0.05)(D, D)),
        }
    _A_in = _A_setup()

    def _B_setup():
        B, S, Dm, Df = 1, 2048, 640, 1536
        return {
            "x": _w((lambda *s: torch.randn(*s, dtype=torch.bfloat16) * 0.05)(B, S, Dm)),
            "w_gate": _w((lambda *s: torch.randn(*s, dtype=torch.bfloat16) * 0.8)(Dm, Df) * (Dm ** -0.5)),
            "w_up": _w((lambda *s: torch.randn(*s, dtype=torch.bfloat16) * 0.8)(Dm, Df) * (Dm ** -0.5)),
            "w_down": _w((lambda *s: torch.randn(*s, dtype=torch.bfloat16) * 0.8)(Df, Dm) * (Df ** -0.5)),
        }
    _B_in = _B_setup()

    return {
        "A_x": _A_in["x"],
        "A_wqkv": _A_in["wqkv"],
        "A_wo": _A_in["wo"],
        "B_x": _B_in["x"],
        "B_w_gate": _B_in["w_gate"],
        "B_w_up": _B_in["w_up"],
        "B_w_down": _B_in["w_down"],
    }

def reference(A_x, A_wqkv, A_wo, B_x, B_w_gate, B_w_up, B_w_down):
    def _A_ref(x, wqkv, wo):
        B, S, D = x.shape
        H = 32
        Dh = D // H
        qkv = (lambda x, *d: x.permute(*d))((x @ wqkv).reshape(B, S, 3, H, Dh), 2, 0, 3, 1, 4)
        q, k, v = qkv[0], qkv[1], qkv[2]
        scores = torch.einsum("bhqd,bhkd->bhqk", q, k) * (Dh ** -0.5)
        p = _softmax(scores, axis=-1)
        o = torch.einsum("bhqk,bhkd->bhqd", p, v)
        return (lambda x, *d: x.permute(*d))(o, 0, 2, 1, 3).reshape(B, S, D) @ wo

    def _B_ref(x, w_gate, w_up, w_down):
        g = torch.einsum("bsd,df->bsf", x, w_gate)
        u = torch.einsum("bsd,df->bsf", x, w_up)
        h = _gelu(g) * u
        return torch.einsum("bsf,fd->bsd", h, w_down)

    x = A_x
    h = x + _A_ref(_layernorm(x, axis=-1), A_wqkv, A_wo)
    h2 = h + _B_ref(_layernorm(h, axis=-1), B_w_gate, B_w_up, B_w_down)
    return h2
```

```python
import re

class Asm:
    def __init__(self):
        self.lines = []
    def __call__(self, s):
        for l in s.strip("\n").split("\n"):
            l = l.strip()
            if l:
                self.lines.append(l)
    def label(self, name):
        self.lines.append(name + ":")
    def comment(self, s):
        self.lines.append("; " + s)
    def text(self):
        out = []
        for l in self.lines:
            if l.endswith(":") or l.startswith("."):
                out.append(l)
            else:
                out.append("    " + l)
        return "\n".join(out) + "\n"

def vr(a, n=1):
    return f"v{a}" if n == 1 else f"v[{a}:{a+n-1}]"
def sr(a, n=1):
    return f"s{a}" if n == 1 else f"s[{a}:{a+n-1}]"

_REG = re.compile(r"^(-|\|)?(abs\()?(?P<f>[vsa])(?:(?P<n>\d+)|\[(?P<lo>\d+):(?P<hi>\d+)\])\)?\|?$")
def regs(tok):
    tok = tok.strip()
    if tok in ("vcc", "exec"):
        return {(tok, 0)}
    if tok in ("vcc_lo", "vcc_hi"):
        return {("vcc", 0)}
    if tok == "m0":
        return {("m0", 0)}
    m = _REG.match(tok)
    if not m:
        return set()
    f = m.group("f")
    if m.group("n") is not None:
        return {(f, int(m.group("n")))}
    return {(f, i) for i in range(int(m.group("lo")), int(m.group("hi")) + 1)}

TRANS = ("v_exp_", "v_log_", "v_rcp_", "v_rsq_", "v_sqrt_", "v_sin_", "v_cos_")
def passes(mn):
    if "4x4x4" in mn: return 2
    if "16x16" in mn: return 4
    if "32x32" in mn: return 8
    raise ValueError(mn)

class Ins:
    def __init__(self, text):
        self.text = text
        t = text.split(";")[0].strip()
        sp = t.split(None, 1)
        self.mn = sp[0]
        rest = sp[1] if len(sp) > 1 else ""
        ops = [o.strip() for o in rest.split(",")] if rest else []
        if ops:
            last = ops[-1].split()
            ops[-1] = last[0] if last else ""
            self.mods = last[1:]
        else:
            self.mods = []
        self.ops = ops
        mn = self.mn
        self.is_mfma = mn.startswith(("v_mfma", "v_smfmac"))
        self.is_valu = mn.startswith("v_") and not self.is_mfma
        self.is_trans = mn.startswith(TRANS)
        self.is_ds = mn.startswith("ds_")
        self.is_vmem = mn.startswith(("buffer_", "global_"))
        self.is_salu = mn.startswith("s_")
        R = [regs(o) for o in ops]
        w, r = set(), set()
        self.srcc = set(); self.srcab = set()
        if self.is_mfma:
            w = R[0]
            if mn.startswith("v_smfmac"):
                self.srcab = R[1] | R[2] | R[3]; self.srcc = R[0]
            else:
                self.srcab = R[1] | R[2]; self.srcc = R[3]
            r = self.srcab | self.srcc
        elif self.is_valu:
            if mn.startswith("v_cmp"):
                w = R[0]; r = set().union(*R[1:])
            elif mn.startswith("v_permlane") and "swap" in mn:
                w = R[0] | R[1]; r = R[0] | R[1]
            elif mn.startswith(("v_add_co", "v_sub_co", "v_addc_co", "v_subb_co", "v_mad_u64")):
                w = R[0] | R[1]; r = set().union(*R[2:])
            else:
                w = R[0]; r = set().union(*R[1:]) if len(R) > 1 else set()
                if mn.startswith(("v_fmac", "v_dot2c", "v_pk_fmac", "v_writelane")):
                    r |= R[0]
                if mn.startswith("v_cndmask") and len(ops) == 3:
                    r |= {("vcc", 0)}
        elif self.is_ds:
            if mn.startswith(("ds_read", "ds_bpermute", "ds_permute", "ds_swizzle")) or "_rtn_" in mn:
                w = R[0]; r = set().union(*R[1:])
            else:
                r = set().union(*R)
        elif self.is_vmem:
            lds = "lds" in self.mods
            if "load" in mn and not lds:
                w = R[0]; r = set().union(*R[1:])
            else:
                r = set().union(*R) if R else set()
            if lds: r |= {("m0", 0)}
            self.lds = lds
        elif self.is_salu:
            if mn.startswith(("s_cmp", "s_bitcmp", "s_waitcnt", "s_nop", "s_barrier", "s_branch", "s_cbranch", "s_endpgm", "s_setprio", "s_sleep")):
                r = set().union(*R) if R else set()
            else:
                w = R[0] if R else set(); r = set().union(*R[1:]) if len(R) > 1 else set()
                if "saveexec" in mn: w |= {("exec", 0)}
        self.w, self.r = w, r
        self.states = 1
        if mn == "s_nop": self.states = int(ops[0], 0) + 1

def need(p, c):
    n = 0
    vg = lambda s: {x for x in s if x[0] in "va"}
    sg = lambda s: {x for x in s if x[0] in ("s", "vcc")}
    if p.is_valu:
        pw = vg(p.w)
        if c.is_mfma and pw & c.r: n = max(n, 2)
        if c.mn.startswith("v_permlane") and pw & c.r: n = max(n, 2)
        if c.is_valu and any(m.startswith(("row_", "quad_perm", "wave_", "row_bcast")) for m in c.mods) and pw & c.r: n = max(n, 2)
        if c.mn.startswith(("v_readlane", "v_readfirstlane")) and pw & c.r: n = max(n, 1)
        if p.is_trans and c.is_valu and not c.is_trans and pw & c.r: n = max(n, 1)
        ps = sg(p.w)
        if ps:
            if c.is_valu and ps & c.r: n = max(n, 2)
            if c.is_vmem and ps & c.r: n = max(n, 5)
            if c.mn.startswith(("v_readlane", "v_writelane")) and ps & c.r: n = max(n, 4)
            if c.is_salu and ps & c.r: n = max(n, 1)
        if ("exec", 0) in p.w and c.is_mfma: n = max(n, 4)
    if p.is_salu and ("m0", 0) in p.w and c.is_vmem and ("m0", 0) in c.r: n = max(n, 1)
    if p.is_mfma:
        ps = passes(p.mn); i = {2: 0, 4: 1, 8: 2}[ps]
        D = p.w
        if c.is_mfma:
            if D & c.srcc:
                if D == c.srcc and passes(c.mn) == ps: n = max(n, [2, 0, 0][i])
                else: n = max(n, [4, 6, 10][i])
            if D & c.srcab: n = max(n, [5, 8, 12][i])
            if D & c.w and not (D & c.srcc): n = max(n, 0)
        elif (c.is_valu or c.is_ds or c.is_vmem) and D & (c.r | c.w):
            n = max(n, [5, 8, 12][i])
        if c.is_valu and p.srcc & c.w: n = max(n, [1, 3, 7][i])
    if p.is_vmem and "store" in p.mn and ("x3" in p.mn or "x4" in p.mn):
        data = regs(p.ops[0]) if p.mn.startswith("buffer_") else regs(p.ops[1])
        if data & c.w: n = max(n, 2 if c.is_valu else 1)
    return n

def check_hazards(lines, name=""):
    ins = []; labels = {}
    for l in lines:
        l = l.strip()
        if not l or l.startswith((";", ".")): continue
        if l.endswith(":"):
            labels[l[:-1]] = len(ins); continue
        ins.append(Ins(l))
    bad = []
    def scan(seq):
        for i, c in enumerate(seq):
            dist = 0
            for j in range(i - 1, max(-1, i - 24), -1):
                p = seq[j]
                nd = need(p, c)
                if nd > dist:
                    bad.append(f"{name}: need {nd} have {dist}: [{p.text}] -> [{c.text}]")
                dist += p.states
                if dist >= 20: break
                if p.mn in ("s_branch", "s_endpgm"): break
    scan(ins)
    for i, c in enumerate(ins):
        if c.mn.startswith(("s_branch", "s_cbranch")):
            tgt = labels.get(c.ops[0])
            if tgt is None: continue
            pre = ins[max(0, i - 24):i]
            c2 = Ins("s_nop 0")
            scan(pre + [c2] + ins[tgt:tgt + 24])
    return sorted(set(bad))
```

```python
from asmlib import *
import struct, math

S_TOK, D, H, DH, DF = 2048, 640, 32, 20, 1536
Q_OFF = 0
KV_OFF = 2621440
O_OFF = 7864320
H_OFF = 10485760
ACT_OFF = 13107200
WOP_OFF = 19398656
WDP_OFF = 20217856
WGUP_OFF = 22183936
ST_OFF = 26116096
CS_OFF = 26247168
WS_USED = 26259456
ARG = dict(x=0, wqkv=8, wo=16, wg=32, wu=40, wd=48, out=56, dbg=64, ws=72)
EPS = 1e-5

def f32(x):
    return "0x%08x" % struct.unpack("<I", struct.pack("<f", x))[0]

def srd(a, d, base, nbytes):
    a(f"s_mov_b32 s{d}, s{base}")
    a(f"s_mov_b32 s{d+1}, s{base+1}")
    a(f"s_mov_b32 s{d+2}, {nbytes}")
    a(f"s_mov_b32 s{d+3}, 0x20000")

def kernel_head(a, name):
    a(f".globl {name}")
    a(".p2align 8")
    a(f".type {name},@function")
    a.label(name)

def descriptor(name, nvgpr, nsgpr=96, accum=None):
    accum = accum or min(256, (nvgpr + 3) // 4 * 4)
    return f""".p2align 6
.amdhsa_kernel {name}
  .amdhsa_next_free_vgpr {nvgpr}
  .amdhsa_next_free_sgpr {nsgpr}
  .amdhsa_accum_offset {accum}
  .amdhsa_group_segment_fixed_size 0
  .amdhsa_kernarg_size 80
  .amdhsa_user_sgpr_count 2
  .amdhsa_user_sgpr_kernarg_segment_ptr 1
  .amdhsa_system_sgpr_workgroup_id_x 1
  .amdhsa_float_denorm_mode_32 3
.end_amdhsa_kernel
"""

def interleave(mfmas, fillers):
    out = []
    for i, m in enumerate(mfmas):
        out.append(m)
        if i < len(fillers):
            out += fillers[i]
    for f in fillers[len(mfmas):]:
        out += f
    return out

STAMP_OFF = 32 << 20
class Stamper:
    def __init__(self, on, kidx, base=64):
        self.on, self.kidx, self.base, self.n = on, kidx, base, 0
    def stamp(self, a, real=False):
        if not self.on: return
        r = self.base + 2*self.n
        a(f"s_memrealtime s[{r}:{r+1}]" if real else f"s_memtime s[{r}:{r+1}]")
        self.n += 1
    def reset(self, n): self.n = n
    def dump(self, a, wave_sgpr):
        if not self.on: return
        a("s_waitcnt vmcnt(0) lgkmcnt(0)")
        self.stamp(a); self.stamp(a, True)
        a(f"s_load_dwordx2 s[60:61], s[0:1], {ARG['ws']}")
        a("s_waitcnt lgkmcnt(0)")
        a(f"s_add_u32 s60, s60, {STAMP_OFF + self.kidx*(1 << 20)}")
        a("s_addc_u32 s61, s61, 0")
        a("s_mov_b32 s62, 0x100000")
        a("s_mov_b32 s63, 0x20000")
        a(f"s_lshl_b32 s59, s2, 4")
        a(f"s_add_u32 s59, s59, s{wave_sgpr}")
        a(f"s_lshl_b32 s59, s59, 6")
        a("s_mov_b64 exec, 1")
        a("v_mov_b32 v1, 0")
        for i in range(self.n):
            a(f"v_mov_b32 v2, s{self.base + 2*i}")
            a(f"buffer_store_dword v2, v1, s[60:63], s59 offen offset:{4*i}")
        a("s_waitcnt vmcnt(0)")
```

```python
import sys, importlib
from common import *
HEAD = open("sequential_preLN__mha_block__glu_gated_geglu__prompt.s.ref").read().split("; Override launch")[0]

def build(mods, opts=None):
    opts = opts or {}
    parts = [importlib.import_module(m).gen(**opts.get(m, {})) for m in mods]
    bad = []
    for (a, d, l), m in zip(parts, mods):
        bad += check_hazards(a.lines, m)
    out = HEAD + "\n".join(p[2] for p in parts) + "\n"
    out += '.amdgcn_target "amdgcn-amd-amdhsa--gfx950"\n.text\n'
    out += "".join(p[0].text() for p in parts)
    out += '.section .rodata,"a"\n' + "".join(p[1] for p in parts)
    return out, bad

if __name__ == "__main__":
    mods = sys.argv[2].split(",") if len(sys.argv) > 2 else ["k1", "k2", "k3", "k4", "k5"]
    opts = eval(sys.argv[3]) if len(sys.argv) > 3 else {}
    if "all" in opts:
        opts = {m: {**opts["all"], **opts.get(m, {})} for m in mods}
    out, bad = build(mods, opts)
    for b in bad: print("HAZARD", b)
    open(sys.argv[1], "w").write(out)
    print("wrote", sys.argv[1], len(out), "bytes")
```

```python
from asmlib import *
import struct, math

S_TOK, D, H, DH, DF = 2048, 640, 32, 20, 1536
Q_OFF = 0
KV_OFF = 2621440
O_OFF = 7864320
H_OFF = 10485760
ACT_OFF = 13107200
ST_OFF = 19398656
WOP_OFF = 19529728
WDP_OFF = 20348928
WGUP_OFF = 22315008
CS_OFF = 26247168
WS_USED = 26259456
ARG = dict(x=0, wqkv=8, wo=16, wg=32, wu=40, wd=48, out=56, dbg=64, ws=72)
EPS = 1e-5

def f32(x):
    return "0x%08x" % struct.unpack("<I", struct.pack("<f", x))[0]

def srd(a, d, base, nbytes):
    a(f"s_mov_b32 s{d}, s{base}")
    a(f"s_mov_b32 s{d+1}, s{base+1}")
    a(f"s_mov_b32 s{d+2}, {nbytes}")
    a(f"s_mov_b32 s{d+3}, 0x20000")

def kernel_head(a, name):
    a(f".globl {name}")
    a(".p2align 8")
    a(f".type {name},@function")
    a.label(name)

def descriptor(name, nvgpr, nsgpr=96, accum=None):
    accum = accum or min(256, (nvgpr + 3) // 4 * 4)
    return f""".p2align 6
.amdhsa_kernel {name}
  .amdhsa_next_free_vgpr {nvgpr}
  .amdhsa_next_free_sgpr {nsgpr}
  .amdhsa_accum_offset {accum}
  .amdhsa_group_segment_fixed_size 0
  .amdhsa_kernarg_size 80
  .amdhsa_user_sgpr_count 2
  .amdhsa_user_sgpr_kernarg_segment_ptr 1
  .amdhsa_system_sgpr_workgroup_id_x 1
  .amdhsa_float_denorm_mode_32 3
.end_amdhsa_kernel
"""

def interleave(mfmas, fillers):
    out = []
    for i, m in enumerate(mfmas):
        out.append(m)
        if i < len(fillers):
            out += fillers[i]
    for f in fillers[len(mfmas):]:
        out += f
    return out

STAMP_OFF = 32 << 20
class Stamper:
    def __init__(self, on, kidx, base=64):
        self.on, self.kidx, self.base, self.n = on, kidx, base, 0
    def stamp(self, a, real=False):
        if not self.on: return
        r = self.base + 2*self.n
        a(f"s_memrealtime s[{r}:{r+1}]" if real else f"s_memtime s[{r}:{r+1}]")
        self.n += 1
    def reset(self, n): self.n = n
    def dump(self, a, wave_sgpr):
        if not self.on: return
        a("s_waitcnt vmcnt(0) lgkmcnt(0)")
        self.stamp(a); self.stamp(a, True)
        a(f"s_load_dwordx2 s[60:61], s[0:1], {ARG['ws']}")
        a("s_waitcnt lgkmcnt(0)")
        a(f"s_add_u32 s60, s60, {STAMP_OFF + self.kidx*(1 << 20)}")
        a("s_addc_u32 s61, s61, 0")
        a("s_mov_b32 s62, 0x100000")
        a("s_mov_b32 s63, 0x20000")
        a(f"s_lshl_b32 s59, s2, 4")
        a(f"s_add_u32 s59, s59, s{wave_sgpr}")
        a(f"s_lshl_b32 s59, s59, 6")
        a("s_mov_b64 exec, 1")
        a("v_mov_b32 v1, 0")
        for i in range(self.n):
            a(f"v_mov_b32 v2, s{self.base + 2*i}")
            a(f"buffer_store_dword v2, v1, s[60:63], s59 offen offset:{4*i}")
        a("s_waitcnt vmcnt(0)")
```

```python
import sys, importlib
from common import *
HEAD = open("sequential_preLN__mha_block__glu_gated_geglu__prompt.s.ref").read().split("; Override launch")[0]

DESC = """;
;      row sums, squares and column sums come from small side MFMAs. Waves 4-7 stream operands by LDS-DMA.
;      running maximum (L2_fallback). Side jobs: weights re-tiled into fragment order, hand-off buffers marked.
; Phases 2 -> 3 -> 4 -> 5 use buffers pre-filled with an all-ones marker (a NaN no producer stores): consumers
"""

def build(mods, opts=None):
    opts = opts or {}
    parts = [importlib.import_module(m).gen(**opts.get(m, {})) for m in mods]
    bad = []
    for (a, d, l), m in zip(parts, mods):
        bad += check_hazards(a.lines, m)
    out = HEAD + "\n".join(p[2] for p in parts) + "\n" + DESC
    out += '.amdgcn_target "amdgcn-amd-amdhsa--gfx950"\n.text\n'
    out += "".join(p[0].text() for p in parts)
    out += '.section .rodata,"a"\n' + "".join(p[1] for p in parts)
    return out, bad

if __name__ == "__main__":
    mods = sys.argv[2].split(",") if len(sys.argv) > 2 else ["k1", "k2", "k3", "k4", "k5"]
    opts = eval(sys.argv[3]) if len(sys.argv) > 3 else {}
    if "all" in opts:
        opts = {m: {**opts["all"], **opts.get(m, {})} for m in mods}
    out, bad = build(mods, opts)
    for b in bad: print("HAZARD", b)
    open(sys.argv[1], "w").write(out)
    print("wrote", sys.argv[1], len(out), "bytes")
```
